```python
import torch

def _softmax(x, axis=-1):
    return torch.softmax(x, dim=axis)
def _gelu(x):
    return torch.nn.functional.gelu(x, approximate="tanh")
def _silu(x):
    return torch.nn.functional.silu(x)
def _sigmoid(x):
    return torch.sigmoid(x)
def _layernorm(x, axis=-1, eps=1e-5):
    m = x.mean(dim=axis, keepdim=True)
    v = x.var(dim=axis, keepdim=True, unbiased=False)
    return (x - m) / torch.sqrt(v + eps)
def _scatter_add(tgt, idx, src, axis=0):
    return tgt.clone().index_add_(axis, idx, src)
def _segment_sum(src, seg, n):
    out = torch.zeros((n,) + src.shape[1:], dtype=src.dtype)
    return out.index_add_(0, seg, src)
def _pad(x, pw):
    flat = tuple(v for pair in reversed(pw) for v in pair)
    return torch.nn.functional.pad(x, flat)

kernel_name = 'standalone__gqa_softmax__near_ridge'

def setup_inputs():

    _w = (lambda a: (lambda t: t.to(torch.bfloat16) if t.is_floating_point() else t)(torch.as_tensor(a)))
    B, Hq, Hkv, Sq, Sk, D = 8, 32, 8, 112, 1024, 128
    return {
        "q": _w((lambda *s: torch.randn(*s, dtype=torch.bfloat16) * 0.8)(B, Hq, Sq, D)),
        "k": _w((lambda *s: torch.randn(*s, dtype=torch.bfloat16) * 0.8)(B, Hkv, Sk, D)),
        "v": _w((lambda *s: torch.randn(*s, dtype=torch.bfloat16) * 0.05)(B, Hkv, Sk, D)),
    }

def reference(q, k, v):
    B, Hq, Sq, D = q.shape
    Hkv = k.shape[1]
    rep = Hq // Hkv
    k = (lambda x, n, axis: torch.repeat_interleave(x, n, dim=axis))(k, rep, axis=1)
    v = (lambda x, n, axis: torch.repeat_interleave(x, n, dim=axis))(v, rep, axis=1)
    scale = D ** -0.5
    scores = torch.einsum("bhqd,bhkd->bhqk", q, k) * scale
    p = _softmax(scores, axis=-1)
    return torch.einsum("bhqk,bhkd->bhqd", p, v)
```

```python
import re

_REG = re.compile(r"\b([vas])(?:(\d+)|\[(\d+):(\d+)\])")


def regs_of(tok):
    out = []
    for m in _REG.finditer(tok):
        k = m.group(1)
        if m.group(2) is not None:
            out.append((k, int(m.group(2))))
        else:
            out += [(k, i) for i in range(int(m.group(3)), int(m.group(4)) + 1)]
    return out


TRANS = ("v_exp_f32", "v_rcp_f32", "v_log_f32", "v_rsq_f32", "v_sqrt_f32")


class Op:
    __slots__ = ("text", "mn", "kind", "rd", "wr", "a", "b", "c", "passes", "tag")

    def __init__(self, text, tag=None):
        self.text = text
        self.tag = tag
        body = text.split(";")[0].strip()
        parts = body.split(None, 1)
        mn = parts[0]
        self.mn = mn
        ops = [t.strip() for t in parts[1].split(",")] if len(parts) > 1 else []
        self.rd, self.wr = set(), set()
        self.a = self.b = self.c = ()
        self.passes = 0
        R = lambda i: regs_of(ops[i]) if i < len(ops) else []
        if mn.endswith(":"):
            self.kind = "label"
        elif mn.startswith("v_mfma"):
            self.kind = "mfma"
            self.wr = set(R(0))
            self.a, self.b, self.c = tuple(R(1)), tuple(R(2)), tuple(R(3))
            self.rd = set(self.a) | set(self.b) | set(self.c)
            self.passes = 8 if "32x32" in mn else 4
        elif mn.startswith("ds_read"):
            self.kind = "dsr"
            self.wr = set(R(0))
            self.rd = set(R(1))
        elif mn.startswith("ds_write"):
            self.kind = "dsw"
            self.rd = set(R(0)) | set(R(1))
        elif mn.startswith("buffer_load") or mn.startswith("global_load"):
            self.kind = "vmem"
            if body.rstrip().endswith(" lds") or "_lds_" in mn:
                for i in range(len(ops)):
                    self.rd |= set(R(i))
                self.rd.add(("m", 0))
            else:
                self.wr = set(R(0))
                for i in range(1, len(ops)):
                    self.rd |= set(R(i))
        elif mn.startswith("buffer_store") or mn.startswith("global_store"):
            self.kind = "store"
            for i in range(len(ops)):
                self.rd |= set(R(i))
            self.a = tuple(R(0)) if mn.startswith("buffer") else tuple(R(1))
        elif mn.startswith("v_"):
            self.kind = "trans" if mn.replace("_e32", "").replace("_e64", "") in TRANS else "valu"
            if mn.startswith("v_cmp"):
                if ops[0] == "vcc":
                    self.wr = {("vcc", 0)}
                else:
                    self.wr = set(R(0))
                for i in range(1, len(ops)):
                    self.rd |= set(R(i))
            elif mn.startswith("v_permlane"):
                self.wr = set(R(0)) | set(R(1))
                self.rd = set(self.wr)
            else:
                self.wr = set(R(0))
                for i in range(1, len(ops)):
                    self.rd |= set(R(i))
                    if ops[i] == "vcc":
                        self.rd.add(("vcc", 0))
                if mn.startswith("v_fmac") or mn.startswith("v_dot2c"):
                    self.rd |= self.wr
        elif mn == "s_waitcnt":
            self.kind = "wait"
        elif mn == "s_nop":
            self.kind = "nop"
        elif mn == "s_barrier":
            self.kind = "barrier"
        elif mn.startswith("s_"):
            self.kind = "salu"
            if ops:
                if ops[0] == "m0":
                    self.wr = {("m", 0)}
                elif not mn.startswith("s_cmp") and not mn.startswith("s_cbranch"):
                    self.wr = set(R(0))
                for i in range(0 if mn.startswith("s_cmp") else 1, len(ops)):
                    self.rd |= set(R(i))
                    if ops[i] == "vcc":
                        self.rd.add(("vcc", 0))
        else:
            raise ValueError("unknown instruction: " + text)

    def states(self):
        if self.kind == "label":
            return 0
        if self.kind == "nop":
            return int(self.text.split()[1]) + 1
        return 1


def need_between(p, c):
    n = 0
    pv = p.kind in ("valu", "trans")
    cv = c.kind in ("valu", "trans")
    if pv:
        vw = {r for r in p.wr if r[0] in "va"}
        sw = {r for r in p.wr if r[0] in ("s", "vcc")}
        if c.kind == "mfma" and vw & c.rd:
            n = max(n, 2)
        if p.kind == "trans" and cv and c.kind != "trans" and vw & c.rd:
            n = max(n, 1)
        if p.kind == "trans" and c.kind in ("dsw", "store", "vmem", "dsr") and vw & c.rd:
            n = max(n, 1)
        if c.mn.startswith("v_permlane") and vw & c.rd:
            n = max(n, 2)
        if c.mn.startswith("v_readfirstlane") or c.mn.startswith("v_readlane"):
            if vw & c.rd:
                n = max(n, 1)
        if cv and sw & c.rd:
            n = max(n, 2)
        if c.kind in ("vmem", "store") and sw & c.rd:
            n = max(n, 5)
        if c.kind == "salu" and sw & c.rd:
            n = max(n, 1)
    if p.kind == "mfma":
        big = {8: 12, 4: 8}[p.passes]
        mid = {8: 10, 4: 6}[p.passes]
        war = {8: 7, 4: 3}[p.passes]
        if c.kind == "mfma":
            if p.wr & (set(c.a) | set(c.b)):
                n = max(n, big)
            if p.wr & set(c.c):
                if not (set(c.c) == p.wr and c.passes == p.passes):
                    n = max(n, mid)
            elif p.wr & c.wr:
                n = max(n, mid)
        elif cv:
            if p.wr & (c.rd | c.wr):
                n = max(n, big)
            if set(p.c) & c.wr:
                n = max(n, war)
        elif c.kind in ("dsr", "dsw", "vmem", "store"):
            if p.wr & (c.rd | c.wr):
                n = max(n, big)
            if set(p.c) & c.wr:
                n = max(n, war)
    if p.kind == "salu" and ("m", 0) in p.wr and ("m", 0) in c.rd:
        n = max(n, 1)
    if p.kind == "store" and len(p.a) >= 3 and set(p.a) & c.wr:
        n = max(n, 2)
    if p.kind == "dsw" and c.wr & p.rd and cv:
        n = max(n, 0)
    return n


def check_hazards(ops, fix=True, window=24):
    out = []
    for op in ops:
        if op.kind == "label":
            out.append(op)
            continue
        dist = 0
        short = 0
        for p in reversed(out[-window * 2:]):
            need = need_between(p, op)
            if need > dist:
                short = max(short, need - dist)
            dist += p.states()
            if dist > window:
                break
        if short:
            if not fix:
                raise RuntimeError("hazard before: " + op.text)
            k = short
            while k > 0:
                m = min(k, 16)
                out.append(Op("s_nop %d" % (m - 1), tag="hz"))
                k -= m
        out.append(op)
    return out


def check_waits(ops):
    lq, vq = [], []
    for op in ops:
        if op.kind == "wait":
            m = re.search(r"lgkmcnt\((\d+)\)", op.text)
            if m:
                n = int(m.group(1))
                lq = lq[len(lq) - n:] if n < len(lq) else lq
                if n == 0:
                    lq = []
            m = re.search(r"vmcnt\((\d+)\)", op.text)
            if m:
                n = int(m.group(1))
                vq = vq[len(vq) - n:] if n < len(vq) else vq
                if n == 0:
                    vq = []
            continue
        touched = op.rd | op.wr
        for q in (lq, vq):
            for o in q:
                if o.wr & touched:
                    raise RuntimeError("unwaited result of '%s' touched by '%s'" % (o.text, op.text))
        if op.kind in ("dsr", "dsw"):
            lq.append(op)
        if op.kind in ("vmem", "store"):
            vq.append(op)
    return True


def auto_lgkm(ops):
    out = []
    lq = []
    idx = [i for i, o in enumerate(ops) if o == "WAITL" or (not isinstance(o, str) and o.kind == "wait" and "lgkmcnt" in o.text)]
    for i, op in enumerate(ops):
        if isinstance(op, str):
            assert op == "WAITL"
            nxt = min([j for j in idx if j > i], default=len(ops))
            touched = set()
            for o in ops[i + 1:nxt]:
                touched |= o.rd | o.wr
            last = -1
            for k, o in enumerate(lq):
                if o.wr & touched:
                    last = k
            n = len(lq) - 1 - last
            if last < 0:
                continue
            n = min(n, 15)
            out.append(Op("s_waitcnt lgkmcnt(%d)" % n))
            lq = lq[len(lq) - n:] if n else []
            continue
        if op.kind == "wait":
            m = re.search(r"lgkmcnt\((\d+)\)", op.text)
            if m:
                n = int(m.group(1))
                lq = lq[len(lq) - n:] if n else []
        if op.kind in ("dsr", "dsw"):
            lq.append(op)
        out.append(op)
    return out
```

```python
import sys, math, struct, argparse
from asmlib import Op, check_hazards, check_waits, auto_lgkm

NAME = "standalone__gqa_softmax__near_ridge_kernel"

vLANE = 0
vT = [1, 2, 3, 4, 5, 6, 7]
vOFFK = [8, 9, 10, 11]
vOFFV = 12
vL = [13, 14]
vM = 15
vAK = list(range(16, 24))
vAV = list(range(24, 28))
vX = [28, 29, 30, 31]
vQ = 32
vO = 64
vS = [128, 144]
vC = 160
vP = 176
vKF = 184
vVF = 216
vAS = list(range(248, 256))

sQ, sK, sV, sO = 12, 16, 20, 24
sW = 28
sT = [29, 30, 31, 32, 33, 34, 35]
sSC = 36
sD = 40
sST = 44

LDS_K, LDS_V, LDS_S = 0, 65536, 131072
QBYTES = 112 * 256
KVBYTES = 1024 * 256


def f32bits(x):
    return struct.unpack("<I", struct.pack("<f", x))[0]


def vr(b, n):
    return "v[%d:%d]" % (b, b + n - 1)


def sr(b, n):
    return "s[%d:%d]" % (b, b + n - 1)


class Gen:
    def __init__(self, a):
        self.a = a
        self.nstamp = 0

    def stamp(self, L, wait=True):
        if not self.a.stamp:
            return
        k = self.nstamp
        self.nstamp += 1
        assert sST + 2 * k + 1 < 100
        L.append(Op("s_memtime %s" % sr(sST + 2 * k, 2)))
        if wait:
            L.append(Op("s_waitcnt lgkmcnt(0)"))

    def prologue(self):
        L = []
        e = lambda s: L.append(Op(s))
        e("s_cmp_ge_u32 s2, 256")
        e("s_cbranch_scc1 L_end")
        e("s_load_dwordx8 s[4:11], s[0:1], 0")
        if self.a.stamp:
            e("s_load_dwordx2 s[40:41], s[0:1], 40")
            e("s_memrealtime s[98:99]")
            self.stamp(L, wait=False)
        e("v_lshrrev_b32 v1, 6, v0")
        e("v_and_b32 v0, 63, v0")
        e("v_readfirstlane_b32 s%d, v1" % sW)
        e("s_and_b32 s29, s2, 7")
        e("s_lshr_b32 s30, s2, 3")
        e("s_and_b32 s31, s30, 3")
        e("s_lshr_b32 s30, s30, 2")
        e("s_lshl_b32 s30, s30, 3")
        e("s_or_b32 s30, s30, s29")
        e("s_lshl_b32 s32, s30, 2")
        e("s_or_b32 s32, s32, s31")
        e("s_mul_i32 s32, s32, %d" % QBYTES)
        e("s_lshl_b32 s33, s30, 18")
        e("v_lshrrev_b32 v1, 4, v0")
        e("v_and_b32 v2, 15, v0")
        e("v_lshlrev_b32 v3, 8, v1")
        e("v_xor_b32 v4, v2, v1")
        for j in range(4):
            if j:
                e("v_xor_b32 v5, %d, v4" % (4 * j))
                e("v_lshl_add_u32 v%d, v5, 4, v3" % vOFFK[j])
            else:
                e("v_lshl_add_u32 v%d, v4, 4, v3" % vOFFK[j])
        e("v_lshlrev_b32 v5, 2, v1")
        e("v_xor_b32 v5, v5, v2")
        e("v_lshl_add_u32 v%d, v5, 4, v3" % vOFFV)
        e("s_waitcnt lgkmcnt(0)")
        for (srd, ptr, off, nb) in ((sQ, 4, 32, QBYTES), (sK, 6, 33, KVBYTES), (sV, 8, 33, KVBYTES), (sO, 10, 32, QBYTES)):
            e("s_add_u32 s%d, s%d, s%d" % (srd, ptr, off))
            e("s_addc_u32 s%d, s%d, 0" % (srd + 1, ptr + 1))
            e("s_mov_b32 s%d, %d" % (srd + 2, nb))
            e("s_mov_b32 s%d, 0x20000" % (srd + 3))
        if self.a.stamp:
            e("s_mov_b32 s42, 0x10000000")
            e("s_mov_b32 s43, 0x20000")
        e("s_cmp_ge_u32 s%d, 4" % sW)
        e("s_cbranch_scc1 L_helper")
        return L

    def stamp_out(self, L):
        if not self.a.stamp:
            return
        e = lambda s: L.append(Op(s))
        e("s_memrealtime s[96:97]")
        e("s_getreg_b32 s29, hwreg(HW_REG_HW_ID)")
        e("s_getreg_b32 s30, hwreg(HW_REG_XCC_ID)")
        e("s_waitcnt lgkmcnt(0)")
        e("v_mov_b32 v1, 0")
        for k in range(self.nstamp_max):
            e("v_writelane_b32 v1, s%d, %d" % (sST + 2 * k, k))
        e("v_writelane_b32 v1, s98, 28")
        e("v_writelane_b32 v1, s96, 29")
        e("v_writelane_b32 v1, s29, 30")
        e("v_writelane_b32 v1, s30, 31")
        e("s_lshl_b32 s29, s2, 3")
        e("s_add_u32 s29, s29, s%d" % sW)
        e("s_lshl_b32 s29, s29, 8")
        e("v_lshlrev_b32 v2, 2, v0")
        e("s_nop 4")
        e("buffer_store_dword v1, v2, s[40:43], s29 offen")

    def dma_group(self, L, isK, tile):
        e = lambda s: L.append(Op(s))
        base = (LDS_K if isK else LDS_V) + (tile % 4) * 16384
        e("s_add_u32 m0, s34, %d" % base)
        e("s_add_u32 s35, s34, %d" % (tile * 16384))
        for j in range(4):
            off = " offset:%d" % (1024 * j) if j else ""
            e("buffer_load_dwordx4 v%d, %s, s35 offen%s%s lds" % (vOFFK[j] if isK else vOFFV, sr(sK if isK else sV, 4), off, self.a.ldflags))

    def helper(self):
        L = []
        e = lambda s: L.append(Op(s))
        self.nstamp = 1
        e("s_sub_u32 s34, s%d, 4" % sW)
        e("s_lshl_b32 s34, s34, 12")
        self.dma_group(L, True, 0)

        def G(t):
            if t + 1 <= 15:
                self.dma_group(L, True, t + 1)
            self.dma_group(L, False, t)

        for t in range(3):
            G(t)
        self.stamp(L)
        e("s_waitcnt vmcnt(24)")
        self.stamp(L)
        e("s_barrier")
        for t in range(16):
            n = sum((8 if u <= 14 else 4) for u in (t + 1, t + 2) if u <= 15)
            e("s_waitcnt vmcnt(%d)" % n)
            self.stamp(L)
            e("s_barrier")
            if t + 3 <= 15:
                G(t + 3)
        return L

    def kread(self, blk, k):
        return Op("ds_read_b128 %s, v%d offset:%d" % (vr(vKF + 4 * k, 4), vAK[k], (blk % 8) * 8192))

    def vread(self, blk, v, u):
        t, dt = v >> 2, v & 3
        return Op("ds_read_b64_tr_b16 %s, v%d offset:%d" % (vr(vVF + 4 * v + 2 * u, 2), vAV[dt], (blk % 8) * 8192 + (16 * t + 8 * u) * 256))

    def compute(self):
        a = self.a
        L = []
        e = lambda s: L.append(Op(s))
        self.nstamp = 1
        if a.prio:
            e("s_setprio %d" % a.prio)
        e("s_lshl_b32 s34, s%d, 13" % sW)
        e("s_add_u32 m0, s34, %d" % LDS_S)
        for half in range(2):
            if half:
                e("s_add_u32 m0, s34, %d" % (LDS_S + 4096))
            e("s_add_u32 s35, s34, %d" % (4096 * half))
            for j in range(4):
                off = " offset:%d" % (1024 * j) if j else ""
                e("buffer_load_dwordx4 v%d, %s, s35 offen%s lds" % (vOFFK[j], sr(sQ, 4), off))
        e("v_and_b32 v1, 31, v0")
        e("v_lshrrev_b32 v2, 5, v0")
        e("v_and_b32 v3, 15, v0")
        e("v_xor_b32 v3, v3, v2")
        e("v_lshlrev_b32 v1, 8, v1")
        e("s_add_u32 s29, s34, %d" % LDS_S)
        for k in range(8):
            if k:
                e("v_xor_b32 v4, %d, v3" % (2 * k))
                e("v_lshl_add_u32 v%d, v4, 4, v1" % vAK[k])
            else:
                e("v_lshl_add_u32 v%d, v3, 4, v1" % vAK[k])
            e("v_add_u32 v%d, s29, v%d" % (vAS[k], vAK[k]))
        e("v_bfe_u32 v1, v0, 2, 2")
        e("v_lshl_add_u32 v3, v2, 2, v1")
        e("v_lshlrev_b32 v3, 8, v3")
        e("v_bfe_u32 v4, v0, 1, 1")
        e("v_lshl_add_u32 v3, v4, 3, v3")
        e("v_add_u32 v3, %d, v3" % LDS_V)
        e("v_bfe_u32 v4, v0, 4, 1")
        e("v_and_b32 v5, 1, v0")
        e("v_lshl_add_u32 v4, v4, 1, v5")
        e("v_lshl_add_u32 v4, v1, 2, v4")
        for dt in range(4):
            if dt:
                e("v_xor_b32 v5, %d, v4" % (4 * dt))
                e("v_lshl_add_u32 v%d, v5, 4, v3" % vAV[dt])
            else:
                e("v_lshl_add_u32 v%d, v4, 4, v3" % vAV[dt])
        for r in range(64):
            e("v_mov_b32 v%d, 0" % (vO + r))
        e("v_mov_b32 v%d, 0" % vL[0])
        e("v_mov_b32 v%d, 0" % vL[1])
        e("s_mov_b32 s%d, 0x%08x" % (sSC, f32bits(math.log2(math.e) / math.sqrt(128.0))))
        e("s_mov_b32 s37, 0xffff0000")
        self.stamp(L)
        e("s_waitcnt vmcnt(0)")
        self.stamp(L)
        for k in range(8):
            e("ds_read_b128 %s, v%d" % (vr(vQ + 4 * k, 4), vAS[k]))

        def qscale(k):
            out = []
            for r in range(4):
                q = vQ + 4 * k + r
                t0, t1 = vX[2 * (r & 1)], vX[2 * (r & 1) + 1]
                out.append(Op("v_lshlrev_b32 v%d, 16, v%d" % (t0, q)))
                out.append(Op("v_and_b32 v%d, s37, v%d" % (t1, q)))
                out.append(Op("v_mul_f32 v%d, s%d, v%d" % (t0, sSC, t0)))
                out.append(Op("v_mul_f32 v%d, s%d, v%d" % (t1, sSC, t1)))
                out.append(Op("v_cvt_pk_bf16_f32 v%d, v%d, v%d" % (q, t0, t1)))
            return out

        L.append("WAITL")
        L += qscale(0)
        L.append("WAITL")
        L += qscale(1)
        e("s_waitcnt lgkmcnt(0)")
        e("s_barrier")
        self.stamp(L)
        for k in range(8):
            L.append(self.kread(0, k))
        L += qscale(2)

        NB = 32
        mf = {}
        fill = {}

        def add(G, op, pri=5):
            fill.setdefault(G, []).append((pri, len(fill.get(G, [])), op))

        MF = "v_mfma_f32_32x32x16_bf16"
        for b in range(NB):
            S = vS[b & 1]
            for k in range(8):
                c = vr(S, 16) if k else ("0" if b == 0 else vr(vC, 16))
                mf[16 * (b - 1) + k] = Op("%s %s, %s, %s, %s" % (MF, vr(S, 16), vr(vKF + 4 * k, 4), vr(vQ + 4 * k, 4), c))
            for v in range(8):
                t, dt = v >> 2, v & 3
                mf[16 * b + 8 + v] = Op("%s %s, %s, %s, %s" % (MF, vr(vO + 16 * dt, 16), vr(vVF + 4 * v, 4), vr(vP + 4 * t, 4), vr(vO + 16 * dt, 16)))
            for r in range(16):
                if b == 0:
                    g0 = (r * 10) // 16
                    add(g0, Op("v_add_f32 v%d, v%d, v%d" % (S + r, S + r, vC)), 1)
                    add(g0, Op("v_exp_f32 v%d, v%d" % (S + r, S + r)), 2)
                else:
                    g0 = 16 * (b - 1) + 9 + r
                    if b == NB - 1 and r >= 7:
                        g0 = 16 * b + (r - 7) // 2
                    add(g0, Op("v_exp_f32 v%d, v%d" % (S + r, S + r)), 2)
                add(g0 + 1, Op("v_add_f32 v%d, v%d, v%d" % (vL[r & 1], vL[r & 1], S + r)), 4)
                if r & 1:
                    add(g0 + 1, Op("v_cvt_pk_bf16_f32 v%d, v%d, v%d" % (vP + r // 2, S + r - 1, S + r)), 6)
        for k in range(8):
            if 3 + k < 8:
                for o in qscale(3 + k):
                    add(-16 + k, o, 3)
            add(-16 + k, self.kread(1, k), 7)
        S = vS[0]
        mx = []
        mx.append(Op("v_max3_f32 v%d, v%d, v%d, v%d" % (vX[0], S, S + 1, S + 2)))
        mx.append(Op("v_max3_f32 v%d, v%d, v%d, v%d" % (vX[1], S + 3, S + 4, S + 5)))
        mx.append(Op("v_max3_f32 v%d, v%d, v%d, v%d" % (vX[2], S + 6, S + 7, S + 8)))
        mx.append(Op("v_max3_f32 v%d, v%d, v%d, v%d" % (vX[3], S + 9, S + 10, S + 11)))
        mx.append(Op("v_max3_f32 v%d, v%d, v%d, v%d" % (vX[0], vX[0], S + 12, S + 13)))
        mx.append(Op("v_max3_f32 v%d, v%d, v%d, v%d" % (vX[1], vX[1], S + 14, S + 15)))
        mx.append(Op("v_max3_f32 v%d, v%d, v%d, v%d" % (vX[0], vX[0], vX[2], vX[3])))
        mx.append(Op("v_max_f32 v%d, v%d, v%d" % (vX[0], vX[0], vX[1])))
        mx.append(Op("v_mov_b32 v%d, v%d" % (vX[1], vX[0])))
        mx.append(Op("v_permlane32_swap_b32 v%d, v%d" % (vX[0], vX[1])))
        mx.append(Op("v_max_f32 v%d, v%d, v%d" % (vX[0], vX[0], vX[1])))
        for r in range(16):
            mx.append(Op("v_sub_f32 v%d, 0, v%d" % (vC + r, vX[0])))
        for o in mx:
            add(-4, o, 3)
        for t in range(16):
            beta = 32 * t - 3
            add(beta, Op("s_waitcnt lgkmcnt(0)"), -2)
            add(beta, Op("s_barrier"), -1)
            if a.stamp and (t % 2 == 0 or t == 15):
                st = []
                self.stamp(st, wait=False)
                add(beta, st[0], -3)
            seq = []
            for (kind, blk) in (("V", 2 * t), ("K", 2 * t + 2), ("V", 2 * t + 1), ("K", 2 * t + 3)):
                if kind == "V":
                    seq += [self.vread(blk, v, u) for v in range(8) for u in range(2)]
                else:
                    seq += [self.kread(blk, k) if blk < NB else None for k in range(8)]
            for q, o in enumerate(seq):
                if o is not None:
                    add(beta + (q * a.rspan) // 48, o, 3 if (q & 1) else 5)
        G0, G1 = -16, 16 * NB
        marks = []
        for G in range(G0, G1):
            if G % 16 in (0, 8, 12) or G < -8:
                L.append("WAITL")
            if G in mf:
                L.append(mf[G])
            for (_, _, o) in sorted(fill.get(G, []), key=lambda x: (x[0], x[1])):
                L.append(o)
        assert max(fill) < G1
        self.stamp(L)
        e("v_add_f32 v%d, v%d, v%d" % (vL[0], vL[0], vL[1]))
        e("v_mov_b32 v%d, v%d" % (vL[1], vL[0]))
        e("v_permlane32_swap_b32 v%d, v%d" % (vL[0], vL[1]))
        e("v_add_f32 v%d, v%d, v%d" % (vL[0], vL[0], vL[1]))
        e("v_rcp_f32 v%d, v%d" % (vX[0], vL[0]))
        e("s_add_u32 s29, s34, %d" % LDS_S)
        e("v_lshlrev_b32 v1, 4, v0")
        e("v_add_u32 v1, s29, v1")
        for x in range(8):
            o = vO + 8 * x
            for r in range(8):
                e("v_mul_f32 v%d, v%d, v%d" % (o + r, vX[0], o + r))
            for r in range(4):
                e("v_cvt_pk_bf16_f32 v%d, v%d, v%d" % (vKF + 4 * x + r, o + 2 * r, o + 2 * r + 1))
            e("ds_write_b128 v%d, %s" % (vAS[x], vr(vKF + 4 * x, 4)))
        e("s_waitcnt lgkmcnt(0)")
        for n in range(8):
            e("ds_read_b128 %s, v1 offset:%d" % (vr(vVF + 4 * n, 4), 1024 * n))
        e("s_add_u32 s35, s34, 4096")
        for n in range(8):
            L.append(Op("s_waitcnt lgkmcnt(%d)" % (7 - n)))
            off = " offset:%d" % (1024 * (n & 3)) if n & 3 else ""
            e("buffer_store_dwordx4 %s, v%d, %s, s%d offen%s%s" % (vr(vVF + 4 * n, 4), vOFFK[n & 3], sr(sO, 4), 35 if n >= 4 else 34, off, a.stflags))
        self.stamp(L)
        if a.stamp:
            e("s_waitcnt vmcnt(0)")
            self.stamp(L)
        return L

    def build(self):
        a = self.a
        pro = self.prologue()
        comp = self.compute()
        n1 = self.nstamp
        hel = self.helper()
        self.nstamp_max = max(n1, self.nstamp)
        assert self.nstamp_max <= 26
        self.stamp_out(comp)
        self.stamp_out(hel)
        comp = auto_lgkm(comp)
        full_c = check_hazards(pro + comp)
        check_waits(full_c)
        full_h = check_hazards(pro + hel)
        npro = len(check_hazards(pro))
        hel = full_h[npro:]
        out = []
        w = out.append
        w("; @launch grid=(256,1,1) block=(512,1,1) lds=163840")
        w('.amdgcn_target "amdgcn-amd-amdhsa--gfx950"')
        w(".text")
        w(".globl %s" % NAME)
        w(".p2align 8")
        w(".type %s,@function" % NAME)
        w("%s:" % NAME)
        for o in full_c:
            w("    " + o.text)
        w("L_end:")
        w("    s_endpgm")
        w("L_helper:")
        for o in hel:
            w("    " + o.text)
        w("    s_endpgm")
        w('.section .rodata,"a"')
        w(".p2align 6")
        w(".amdhsa_kernel %s" % NAME)
        w("  .amdhsa_next_free_vgpr 256")
        w("  .amdhsa_next_free_sgpr 102")
        w("  .amdhsa_accum_offset 256")
        w("  .amdhsa_group_segment_fixed_size 0")
        w("  .amdhsa_kernarg_size 48")
        w("  .amdhsa_user_sgpr_count 2")
        w("  .amdhsa_user_sgpr_kernarg_segment_ptr 1")
        w("  .amdhsa_system_sgpr_workgroup_id_x 1")
        w(".end_amdhsa_kernel")
        nh = sum(1 for o in full_c if o.tag == "hz")
        sys.stderr.write("compute ops %d, hazard nops %d, helper ops %d\n" % (len(full_c), nh, len(hel)))
        return "\n".join(out) + "\n"


if __name__ == "__main__":
    p = argparse.ArgumentParser()
    p.add_argument("-o", default="standalone__gqa_softmax__near_ridge.s")
    p.add_argument("--stamp", action="store_true")
    p.add_argument("--prio", type=int, default=1)
    p.add_argument("--rspan", type=int, default=29)
    p.add_argument("--ldflags", default="")
    p.add_argument("--stflags", default="")
    a = p.parse_args()
    if a.ldflags:
        a.ldflags = " " + a.ldflags.replace(",", " ")
    if a.stflags:
        a.stflags = " " + a.stflags.replace(",", " ")
    open(a.o, "w").write(Gen(a).build())
```

```python
import sys, math, struct, argparse
from asmlib import Op, check_hazards, check_waits, auto_lgkm

NAME = "standalone__gqa_softmax__near_ridge_kernel"

vLANE = 0
vT = [1, 2, 3, 4, 5, 6, 7]
vOFFK = [8, 9, 10, 11]
vOFFV = 12
vL = [13, 14]
vM = 15
vAK = list(range(16, 24))
vAV = list(range(24, 28))
vX = [28, 29, 30, 31]
vQ = 32
vO = 64
vS = [128, 144]
vC = 160
vP = 176
vKF = 184
vVF = 216
vAS = list(range(248, 256))

sQ, sK, sV, sO = 12, 16, 20, 24
sW = 28
sT = [29, 30, 31, 32, 33, 34, 35]
sSC = 36
sD = 40
sST = 44

LDS_K, LDS_V, LDS_S = 0, 65536, 131072
QBYTES = 112 * 256
KVBYTES = 1024 * 256


def f32bits(x):
    return struct.unpack("<I", struct.pack("<f", x))[0]


def vr(b, n):
    return "v[%d:%d]" % (b, b + n - 1)


def sr(b, n):
    return "s[%d:%d]" % (b, b + n - 1)


class Gen:
    def __init__(self, a):
        self.a = a
        self.nstamp = 0

    def stamp(self, L, wait=True):
        if not self.a.stamp:
            return
        k = self.nstamp
        self.nstamp += 1
        assert sST + 2 * k + 1 < 100
        L.append(Op("s_memtime %s" % sr(sST + 2 * k, 2)))
        if wait:
            L.append(Op("s_waitcnt lgkmcnt(0)"))

    def prologue(self):
        L = []
        e = lambda s: L.append(Op(s))
        e("s_cmp_ge_u32 s2, 256")
        e("s_cbranch_scc1 L_end")
        e("s_load_dwordx8 s[4:11], s[0:1], 0")
        if self.a.stamp:
            e("s_load_dwordx2 s[40:41], s[0:1], 40")
            e("s_memrealtime s[98:99]")
            self.stamp(L, wait=False)
        e("v_lshrrev_b32 v1, 6, v0")
        e("v_and_b32 v0, 63, v0")
        e("v_readfirstlane_b32 s%d, v1" % sW)
        e("s_and_b32 s29, s2, 7")
        e("s_lshr_b32 s30, s2, 3")
        e("s_and_b32 s31, s30, 3")
        e("s_lshr_b32 s30, s30, 2")
        e("s_lshl_b32 s30, s30, 3")
        e("s_or_b32 s30, s30, s29")
        e("s_lshl_b32 s32, s30, 2")
        e("s_or_b32 s32, s32, s31")
        e("s_mul_i32 s32, s32, %d" % QBYTES)
        e("s_lshl_b32 s33, s30, 18")
        e("v_lshrrev_b32 v1, 4, v0")
        e("v_and_b32 v2, 15, v0")
        e("v_lshlrev_b32 v3, 8, v1")
        e("v_xor_b32 v4, v2, v1")
        for j in range(4):
            if j:
                e("v_xor_b32 v5, %d, v4" % (4 * j))
                e("v_lshl_add_u32 v%d, v5, 4, v3" % vOFFK[j])
            else:
                e("v_lshl_add_u32 v%d, v4, 4, v3" % vOFFK[j])
        e("v_lshlrev_b32 v5, 2, v1")
        e("v_xor_b32 v5, v5, v2")
        e("v_lshl_add_u32 v%d, v5, 4, v3" % vOFFV)
        e("s_waitcnt lgkmcnt(0)")
        for (srd, ptr, off, nb) in ((sQ, 4, 32, QBYTES), (sK, 6, 33, KVBYTES), (sV, 8, 33, KVBYTES), (sO, 10, 32, QBYTES)):
            e("s_add_u32 s%d, s%d, s%d" % (srd, ptr, off))
            e("s_addc_u32 s%d, s%d, 0" % (srd + 1, ptr + 1))
            e("s_mov_b32 s%d, %d" % (srd + 2, nb))
            e("s_mov_b32 s%d, 0x20000" % (srd + 3))
        if self.a.stamp:
            e("s_mov_b32 s42, 0x10000000")
            e("s_mov_b32 s43, 0x20000")
        e("s_cmp_ge_u32 s%d, 4" % sW)
        e("s_cbranch_scc1 L_helper")
        return L

    def stamp_out(self, L):
        if not self.a.stamp:
            return
        e = lambda s: L.append(Op(s))
        e("s_memrealtime s[96:97]")
        e("s_getreg_b32 s29, hwreg(HW_REG_HW_ID)")
        e("s_getreg_b32 s30, hwreg(HW_REG_XCC_ID)")
        e("s_waitcnt lgkmcnt(0)")
        e("v_mov_b32 v1, 0")
        for k in range(self.nstamp_max):
            e("v_writelane_b32 v1, s%d, %d" % (sST + 2 * k, k))
        e("v_writelane_b32 v1, s98, 28")
        e("v_writelane_b32 v1, s96, 29")
        e("v_writelane_b32 v1, s29, 30")
        e("v_writelane_b32 v1, s30, 31")
        e("s_lshl_b32 s29, s2, 3")
        e("s_add_u32 s29, s29, s%d" % sW)
        e("s_lshl_b32 s29, s29, 8")
        e("v_lshlrev_b32 v2, 2, v0")
        e("s_nop 4")
        e("buffer_store_dword v1, v2, s[40:43], s29 offen")

    def dma_group(self, L, isK, tile):
        e = lambda s: L.append(Op(s))
        base = (LDS_K if isK else LDS_V) + (tile % 4) * 16384
        e("s_add_u32 m0, s34, %d" % base)
        e("s_add_u32 s35, s34, %d" % (tile * 16384))
        for j in range(4):
            off = " offset:%d" % (1024 * j) if j else ""
            e("buffer_load_dwordx4 v%d, %s, s35 offen%s%s lds" % (vOFFK[j] if isK else vOFFV, sr(sK if isK else sV, 4), off, self.a.ldflags))

    def helper(self):
        L = []
        e = lambda s: L.append(Op(s))
        self.nstamp = 1
        e("s_sub_u32 s34, s%d, 4" % sW)
        e("s_lshl_b32 s34, s34, 12")
        self.dma_group(L, True, 0)

        def G(t):
            if t + 1 <= 15:
                self.dma_group(L, True, t + 1)
            self.dma_group(L, False, t)

        for t in range(3):
            G(t)
        self.stamp(L)
        e("s_waitcnt vmcnt(24)")
        self.stamp(L)
        e("s_barrier")
        for t in range(16):
            n = sum((8 if u <= 14 else 4) for u in (t + 1, t + 2) if u <= 15)
            e("s_waitcnt vmcnt(%d)" % n)
            self.stamp(L)
            e("s_barrier")
            if t + 3 <= 15:
                G(t + 3)
        return L

    def kread(self, blk, k):
        return Op("ds_read_b128 %s, v%d offset:%d" % (vr(vKF + 4 * k, 4), vAK[k], (blk % 8) * 8192))

    def vread(self, blk, v, u):
        t, dt = v >> 2, v & 3
        return Op("ds_read_b64_tr_b16 %s, v%d offset:%d" % (vr(vVF + 4 * v + 2 * u, 2), vAV[dt], (blk % 8) * 8192 + (16 * t + 8 * u) * 256))

    def compute(self):
        a = self.a
        L = []
        e = lambda s: L.append(Op(s))
        self.nstamp = 1
        if a.prio:
            e("s_setprio %d" % a.prio)
        e("s_lshl_b32 s34, s%d, 13" % sW)
        e("s_add_u32 m0, s34, %d" % LDS_S)
        for half in range(2):
            if half:
                e("s_add_u32 m0, s34, %d" % (LDS_S + 4096))
            e("s_add_u32 s35, s34, %d" % (4096 * half))
            for j in range(4):
                off = " offset:%d" % (1024 * j) if j else ""
                e("buffer_load_dwordx4 v%d, %s, s35 offen%s lds" % (vOFFK[j], sr(sQ, 4), off))
        e("v_and_b32 v1, 31, v0")
        e("v_lshrrev_b32 v2, 5, v0")
        e("v_and_b32 v3, 15, v0")
        e("v_xor_b32 v3, v3, v2")
        e("v_lshlrev_b32 v1, 8, v1")
        e("s_add_u32 s29, s34, %d" % LDS_S)
        for k in range(8):
            if k:
                e("v_xor_b32 v4, %d, v3" % (2 * k))
                e("v_lshl_add_u32 v%d, v4, 4, v1" % vAK[k])
            else:
                e("v_lshl_add_u32 v%d, v3, 4, v1" % vAK[k])
            e("v_add_u32 v%d, s29, v%d" % (vAS[k], vAK[k]))
        e("v_bfe_u32 v1, v0, 2, 2")
        e("v_lshl_add_u32 v3, v2, 2, v1")
        e("v_lshlrev_b32 v3, 8, v3")
        e("v_bfe_u32 v4, v0, 1, 1")
        e("v_lshl_add_u32 v3, v4, 3, v3")
        e("v_add_u32 v3, %d, v3" % LDS_V)
        e("v_bfe_u32 v4, v0, 4, 1")
        e("v_and_b32 v5, 1, v0")
        e("v_lshl_add_u32 v4, v4, 1, v5")
        e("v_lshl_add_u32 v4, v1, 2, v4")
        for dt in range(4):
            if dt:
                e("v_xor_b32 v5, %d, v4" % (4 * dt))
                e("v_lshl_add_u32 v%d, v5, 4, v3" % vAV[dt])
            else:
                e("v_lshl_add_u32 v%d, v4, 4, v3" % vAV[dt])
        for r in range(64):
            e("v_mov_b32 v%d, 0" % (vO + r))
        e("v_mov_b32 v%d, 0" % vL[0])
        e("v_mov_b32 v%d, 0" % vL[1])
        e("s_mov_b32 s%d, 0x%08x" % (sSC, f32bits(math.log2(math.e) / math.sqrt(128.0))))
        e("s_mov_b32 s37, 0xffff0000")
        self.stamp(L)
        e("s_waitcnt vmcnt(0)")
        self.stamp(L)
        for k in range(8):
            e("ds_read_b128 %s, v%d" % (vr(vQ + 4 * k, 4), vAS[k]))

        def qscale(k):
            out = []
            for r in range(4):
                q = vQ + 4 * k + r
                t0, t1 = vX[2 * (r & 1)], vX[2 * (r & 1) + 1]
                out.append(Op("v_lshlrev_b32 v%d, 16, v%d" % (t0, q)))
                out.append(Op("v_and_b32 v%d, s37, v%d" % (t1, q)))
                out.append(Op("v_mul_f32 v%d, s%d, v%d" % (t0, sSC, t0)))
                out.append(Op("v_mul_f32 v%d, s%d, v%d" % (t1, sSC, t1)))
                out.append(Op("v_cvt_pk_bf16_f32 v%d, v%d, v%d" % (q, t0, t1)))
            return out

        L.append("WAITL")
        L += qscale(0)
        L.append("WAITL")
        L += qscale(1)
        e("s_waitcnt lgkmcnt(0)")
        e("s_barrier")
        self.stamp(L)
        for k in range(8):
            L.append(self.kread(0, k))
        L += qscale(2)

        NB = 32
        mf = {}
        fill = {}

        drop = set(a.drop.split(",")) if a.drop else set()

        def add(G, op, pri=5):
            if G >= 16:
                for d in drop:
                    if op.text.startswith(d):
                        return
            fill.setdefault(G, []).append((pri, len(fill.get(G, [])), op))

        MF = "v_mfma_f32_32x32x16_bf16"
        for b in range(NB):
            S = vS[b & 1]
            for k in range(8):
                c = vr(S, 16) if k else ("0" if b == 0 else vr(vC, 16))
                mf[16 * (b - 1) + k] = Op("%s %s, %s, %s, %s" % (MF, vr(S, 16), vr(vKF + 4 * k, 4), vr(vQ + 4 * k, 4), c))
            for v in range(8):
                t, dt = v >> 2, v & 3
                mf[16 * b + 8 + v] = Op("%s %s, %s, %s, %s" % (MF, vr(vO + 16 * dt, 16), vr(vVF + 4 * v, 4), vr(vP + 4 * t, 4), vr(vO + 16 * dt, 16)))
            for r in range(16):
                if b == 0:
                    g0 = (r * 10) // 16
                    add(g0, Op("v_add_f32 v%d, v%d, v%d" % (S + r, S + r, vC)), 1)
                    add(g0, Op("v_exp_f32 v%d, v%d" % (S + r, S + r)), 2)
                else:
                    g0 = 16 * (b - 1) + 9 + r
                    if b == NB - 1 and r >= 7:
                        g0 = 16 * b + (r - 7) // 2
                    add(g0, Op("v_exp_f32 v%d, v%d" % (S + r, S + r)), 2)
                add(g0 + 1, Op("v_add_f32 v%d, v%d, v%d" % (vL[r & 1], vL[r & 1], S + r)), 4)
                if r & 1:
                    add(g0 + 1, Op("v_cvt_pk_bf16_f32 v%d, v%d, v%d" % (vP + r // 2, S + r - 1, S + r)), 6)
        for k in range(8):
            if 3 + k < 8:
                for o in qscale(3 + k):
                    add(-16 + k, o, 3)
            add(-16 + k, self.kread(1, k), 7)
        S = vS[0]
        mx = []
        mx.append(Op("v_max3_f32 v%d, v%d, v%d, v%d" % (vX[0], S, S + 1, S + 2)))
        mx.append(Op("v_max3_f32 v%d, v%d, v%d, v%d" % (vX[1], S + 3, S + 4, S + 5)))
        mx.append(Op("v_max3_f32 v%d, v%d, v%d, v%d" % (vX[2], S + 6, S + 7, S + 8)))
        mx.append(Op("v_max3_f32 v%d, v%d, v%d, v%d" % (vX[3], S + 9, S + 10, S + 11)))
        mx.append(Op("v_max3_f32 v%d, v%d, v%d, v%d" % (vX[0], vX[0], S + 12, S + 13)))
        mx.append(Op("v_max3_f32 v%d, v%d, v%d, v%d" % (vX[1], vX[1], S + 14, S + 15)))
        mx.append(Op("v_max3_f32 v%d, v%d, v%d, v%d" % (vX[0], vX[0], vX[2], vX[3])))
        mx.append(Op("v_max_f32 v%d, v%d, v%d" % (vX[0], vX[0], vX[1])))
        mx.append(Op("v_mov_b32 v%d, v%d" % (vX[1], vX[0])))
        mx.append(Op("v_permlane32_swap_b32 v%d, v%d" % (vX[0], vX[1])))
        mx.append(Op("v_max_f32 v%d, v%d, v%d" % (vX[0], vX[0], vX[1])))
        for r in range(16):
            mx.append(Op("v_sub_f32 v%d, 0, v%d" % (vC + r, vX[0])))
        for o in mx:
            add(-4, o, 3)
        for t in range(16):
            beta = 32 * t - 3
            add(beta, Op("s_waitcnt lgkmcnt(0)"), -2)
            add(beta, Op("s_barrier"), -1)
            if a.stamp and (t % 2 == 0 or t == 15):
                st = []
                self.stamp(st, wait=False)
                add(beta, st[0], -3)
            seq = []
            for (kind, blk) in (("V", 2 * t), ("K", 2 * t + 2), ("V", 2 * t + 1), ("K", 2 * t + 3)):
                if kind == "V":
                    seq += [self.vread(blk, v, u) for v in range(8) for u in range(2)]
                else:
                    seq += [self.kread(blk, k) if blk < NB else None for k in range(8)]
            for q, o in enumerate(seq):
                if o is not None:
                    add(beta + (q * a.rspan) // 48, o, 3 if (q & 1) else 5)
        G0, G1 = -16, 16 * NB
        marks = []
        for G in range(G0, G1):
            if a.loop and G in (16, 144, 272, 400):
                L.append(Op("MARK%d:" % G))
            if G % 16 in (0, 8, 12) or G < -8:
                L.append("WAITL")
            if G in mf:
                L.append(mf[G])
            for (_, _, o) in sorted(fill.get(G, []), key=lambda x: (x[0], x[1])):
                L.append(o)
        assert max(fill) < G1
        self.stamp(L)
        e("v_add_f32 v%d, v%d, v%d" % (vL[0], vL[0], vL[1]))
        e("v_mov_b32 v%d, v%d" % (vL[1], vL[0]))
        e("v_permlane32_swap_b32 v%d, v%d" % (vL[0], vL[1]))
        e("v_add_f32 v%d, v%d, v%d" % (vL[0], vL[0], vL[1]))
        e("v_rcp_f32 v%d, v%d" % (vX[0], vL[0]))
        e("s_add_u32 s29, s34, %d" % LDS_S)
        e("v_lshlrev_b32 v1, 4, v0")
        e("v_add_u32 v1, s29, v1")
        for x in range(8):
            o = vO + 8 * x
            for r in range(8):
                e("v_mul_f32 v%d, v%d, v%d" % (o + r, vX[0], o + r))
            for r in range(4):
                e("v_cvt_pk_bf16_f32 v%d, v%d, v%d" % (vKF + 4 * x + r, o + 2 * r, o + 2 * r + 1))
            e("ds_write_b128 v%d, %s" % (vAS[x], vr(vKF + 4 * x, 4)))
        e("s_waitcnt lgkmcnt(0)")
        for n in range(8):
            e("ds_read_b128 %s, v1 offset:%d" % (vr(vVF + 4 * n, 4), 1024 * n))
        e("s_add_u32 s35, s34, 4096")
        for n in range(8):
            L.append(Op("s_waitcnt lgkmcnt(%d)" % (7 - n)))
            off = " offset:%d" % (1024 * (n & 3)) if n & 3 else ""
            e("buffer_store_dwordx4 %s, v%d, %s, s%d offen%s%s" % (vr(vVF + 4 * n, 4), vOFFK[n & 3], sr(sO, 4), 35 if n >= 4 else 34, off, a.stflags))
        self.stamp(L)
        if a.stamp:
            e("s_waitcnt vmcnt(0)")
            self.stamp(L)
        return L

    def fold(self, ops):
        idx = [i for i, o in enumerate(ops) if o.kind == "label" and o.text.startswith("MARK")]
        segs = [ops[idx[i] + 1:idx[i + 1]] for i in range(len(idx) - 1)]
        strip = lambda seg: [o.text for o in seg if not o.text.startswith("s_memtime")]
        for sg in segs[1:]:
            assert strip(sg) == strip(segs[0]), "periods differ"
        body = segs[-1]
        out = ops[:idx[0]]
        out.append(Op("s_mov_b32 s38, %d" % len(segs)))
        out.append(Op("L_loop:"))
        out += body
        out.append(Op("s_sub_u32 s38, s38, 1"))
        out.append(Op("s_cmp_lg_u32 s38, 0"))
        out.append(Op("s_cbranch_scc1 L_loop"))
        out += ops[idx[-1] + 1:]
        return out

    def build(self):
        a = self.a
        pro = self.prologue()
        comp = self.compute()
        n1 = self.nstamp
        hel = self.helper()
        self.nstamp_max = max(n1, self.nstamp)
        assert self.nstamp_max <= 26
        self.stamp_out(comp)
        self.stamp_out(hel)
        comp = auto_lgkm(comp)
        full_c = check_hazards(pro + comp)
        check_waits(full_c)
        full_h = check_hazards(pro + hel)
        npro = len(check_hazards(pro))
        hel = full_h[npro:]
        out = []
        w = out.append
        w("; @launch grid=(256,1,1) block=(512,1,1) lds=163840")
        w('.amdgcn_target "amdgcn-amd-amdhsa--gfx950"')
        w(".text")
        w(".globl %s" % NAME)
        w(".p2align 8")
        w(".type %s,@function" % NAME)
        w("%s:" % NAME)
        if a.loop:
            full_c = self.fold(full_c)
        for o in full_c:
            w(("" if o.kind == "label" else "    ") + o.text)
        w("L_end:")
        w("    s_endpgm")
        w("L_helper:")
        for o in hel:
            w("    " + o.text)
        w("    s_endpgm")
        w('.section .rodata,"a"')
        w(".p2align 6")
        w(".amdhsa_kernel %s" % NAME)
        w("  .amdhsa_next_free_vgpr 256")
        w("  .amdhsa_next_free_sgpr 102")
        w("  .amdhsa_accum_offset 256")
        w("  .amdhsa_group_segment_fixed_size 0")
        w("  .amdhsa_kernarg_size 48")
        w("  .amdhsa_user_sgpr_count 2")
        w("  .amdhsa_user_sgpr_kernarg_segment_ptr 1")
        w("  .amdhsa_system_sgpr_workgroup_id_x 1")
        w(".end_amdhsa_kernel")
        nh = sum(1 for o in full_c if o.tag == "hz")
        sys.stderr.write("compute ops %d, hazard nops %d, helper ops %d\n" % (len(full_c), nh, len(hel)))
        return "\n".join(out) + "\n"


if __name__ == "__main__":
    p = argparse.ArgumentParser()
    p.add_argument("-o", default="standalone__gqa_softmax__near_ridge.s")
    p.add_argument("--stamp", action="store_true")
    p.add_argument("--prio", type=int, default=1)
    p.add_argument("--loop", action="store_true")
    p.add_argument("--drop", default="")
    p.add_argument("--rspan", type=int, default=29)
    p.add_argument("--ldflags", default="")
    p.add_argument("--stflags", default="")
    a = p.parse_args()
    if a.ldflags:
        a.ldflags = " " + a.ldflags.replace(",", " ")
    if a.stflags:
        a.stflags = " " + a.stflags.replace(",", " ")
    open(a.o, "w").write(Gen(a).build())
```

```python
import sys, math, struct, argparse
from asmlib import Op, check_hazards, check_waits, auto_lgkm

NAME = "standalone__gqa_softmax__near_ridge_kernel"

vLANE = 0
vT = [1, 2, 3, 4, 5, 6, 7]
vOFFK = [8, 9, 10, 11]
vOFFV = 12
vL = [13, 14]
vM = 15
vAK = list(range(16, 24))
vAV = list(range(24, 28))
vX = [28, 29, 30, 31]
vQ = 32
vO = 64
vS = [128, 144]
vC = 160
vP = 176
vKF = 184
vVF = 216
vAS = list(range(248, 256))

sQ, sK, sV, sO = 12, 16, 20, 24
sW = 28
sT = [29, 30, 31, 32, 33, 34, 35]
sSC = 36
sD = 40
sST = 44

LDS_K, LDS_V, LDS_S = 0, 65536, 131072
QBYTES = 112 * 256
KVBYTES = 1024 * 256


def f32bits(x):
    return struct.unpack("<I", struct.pack("<f", x))[0]


def vr(b, n):
    return "v[%d:%d]" % (b, b + n - 1)


def sr(b, n):
    return "s[%d:%d]" % (b, b + n - 1)


class Gen:
    def __init__(self, a):
        self.a = a
        self.nstamp = 0

    def stamp(self, L, wait=True):
        if not self.a.stamp:
            return
        k = self.nstamp
        self.nstamp += 1
        assert sST + 2 * k + 1 < 100
        L.append(Op("%s %s" % ("s_memrealtime" if self.a.rt else "s_memtime", sr(sST + 2 * k, 2))))
        if wait:
            L.append(Op("s_waitcnt lgkmcnt(0)"))

    def prologue(self):
        L = []
        e = lambda s: L.append(Op(s))
        e("s_cmp_ge_u32 s2, 256")
        e("s_cbranch_scc1 L_end")
        e("s_load_dwordx8 s[4:11], s[0:1], 0")
        if self.a.stamp:
            e("s_load_dwordx2 s[40:41], s[0:1], 40")
            e("s_memrealtime s[98:99]")
            self.stamp(L, wait=False)
        e("v_lshrrev_b32 v1, 6, v0")
        e("v_and_b32 v0, 63, v0")
        e("v_readfirstlane_b32 s%d, v1" % sW)
        e("s_and_b32 s29, s2, 7")
        e("s_lshr_b32 s30, s2, 3")
        e("s_and_b32 s31, s30, 3")
        e("s_lshr_b32 s30, s30, 2")
        e("s_lshl_b32 s30, s30, 3")
        e("s_or_b32 s30, s30, s29")
        e("s_lshl_b32 s32, s30, 2")
        e("s_or_b32 s32, s32, s31")
        e("s_mul_i32 s32, s32, %d" % QBYTES)
        e("s_lshl_b32 s33, s30, 18")
        e("v_lshrrev_b32 v1, 4, v0")
        e("v_and_b32 v2, 15, v0")
        e("v_lshlrev_b32 v3, 8, v1")
        e("v_xor_b32 v4, v2, v1")
        for j in range(4):
            if j:
                e("v_xor_b32 v5, %d, v4" % (4 * j))
                e("v_lshl_add_u32 v%d, v5, 4, v3" % vOFFK[j])
            else:
                e("v_lshl_add_u32 v%d, v4, 4, v3" % vOFFK[j])
        e("v_lshlrev_b32 v5, 2, v1")
        e("v_xor_b32 v5, v5, v2")
        e("v_lshl_add_u32 v%d, v5, 4, v3" % vOFFV)
        e("s_waitcnt lgkmcnt(0)")
        for (srd, ptr, off, nb) in ((sQ, 4, 32, QBYTES), (sK, 6, 33, KVBYTES), (sV, 8, 33, KVBYTES), (sO, 10, 32, QBYTES)):
            e("s_add_u32 s%d, s%d, s%d" % (srd, ptr, off))
            e("s_addc_u32 s%d, s%d, 0" % (srd + 1, ptr + 1))
            e("s_mov_b32 s%d, %d" % (srd + 2, nb))
            e("s_mov_b32 s%d, 0x20000" % (srd + 3))
        if self.a.stamp:
            e("s_mov_b32 s42, 0x10000000")
            e("s_mov_b32 s43, 0x20000")
        e("s_cmp_ge_u32 s%d, 4" % sW)
        e("s_cbranch_scc1 L_helper")
        return L

    def stamp_out(self, L):
        if not self.a.stamp:
            return
        e = lambda s: L.append(Op(s))
        e("s_memrealtime s[96:97]")
        e("s_getreg_b32 s29, hwreg(HW_REG_HW_ID)")
        e("s_getreg_b32 s30, hwreg(HW_REG_XCC_ID)")
        e("s_waitcnt lgkmcnt(0)")
        e("v_mov_b32 v1, 0")
        for k in range(self.nstamp_max):
            e("v_writelane_b32 v1, s%d, %d" % (sST + 2 * k, k))
        e("v_writelane_b32 v1, s98, 28")
        e("v_writelane_b32 v1, s96, 29")
        e("v_writelane_b32 v1, s29, 30")
        e("v_writelane_b32 v1, s30, 31")
        e("s_lshl_b32 s29, s2, 3")
        e("s_add_u32 s29, s29, s%d" % sW)
        e("s_lshl_b32 s29, s29, 8")
        e("v_lshlrev_b32 v2, 2, v0")
        e("s_nop 4")
        e("buffer_store_dword v1, v2, s[40:43], s29 offen")

    def dma_group(self, L, isK, tile):
        e = lambda s: L.append(Op(s))
        base = (LDS_K if isK else LDS_V) + (tile % 4) * 16384
        e("s_add_u32 m0, s34, %d" % base)
        if self.a.rot:
            e("s_add_u32 s35, s%d, %d" % (4 + (tile & 3), (tile & ~3) * 16384))
        else:
            e("s_add_u32 s35, s34, %d" % (tile * 16384))
        for j in range(4):
            off = " offset:%d" % (1024 * j) if j else ""
            e("buffer_load_dwordx4 v%d, %s, s35 offen%s%s lds" % (vOFFK[j] if isK else vOFFV, sr(sK if isK else sV, 4), off, self.a.ldflags))

    def helper(self):
        L = []
        e = lambda s: L.append(Op(s))
        self.nstamp = 1
        e("s_sub_u32 s34, s%d, 4" % sW)
        e("s_lshl_b32 s34, s34, 12")
        if self.a.rot:
            for i in range(4):
                e("s_add_u32 s%d, s31, %d" % (4 + i, i))
                e("s_and_b32 s%d, s%d, 3" % (4 + i, 4 + i))
                e("s_lshl_b32 s%d, s%d, 14" % (4 + i, 4 + i))
                e("s_add_u32 s%d, s%d, s34" % (4 + i, 4 + i))
        q = []

        def G(t):
            if self.a.vfirst:
                self.dma_group(L, False, t); q.append(t)
            if t + 1 <= 15:
                self.dma_group(L, True, t + 1); q.append(t)
            if not self.a.vfirst:
                self.dma_group(L, False, t); q.append(t)

        def wait(upto):
            last = max(i for i, x in enumerate(q) if x <= upto)
            e("s_waitcnt vmcnt(%d)" % ((len(q) - 1 - last) * 4))

        self.dma_group(L, True, 0); q.append(-1)
        ramp = [int(x) for x in self.a.ramp.split(",")]
        nxt = 0
        for t in range(-1, 16):
            hi = ramp[t + 1] if t + 1 < len(ramp) else t + 2
            assert hi <= t + 2 or t < 0 or hi <= 2
            while nxt <= min(hi, 15):
                G(nxt); nxt += 1
            wait(t)
            self.stamp(L)
            e("s_barrier")
        return L

    def kread(self, blk, k):
        return Op("ds_read_b128 %s, v%d offset:%d" % (vr(vKF + 4 * k, 4), vAK[k], (blk % 8) * 8192))

    def vread(self, blk, v, u):
        t, dt = v >> 2, v & 3
        return Op("ds_read_b64_tr_b16 %s, v%d offset:%d" % (vr(vVF + 4 * v + 2 * u, 2), vAV[dt], (blk % 8) * 8192 + (16 * t + 8 * u) * 256))

    def compute(self):
        a = self.a
        L = []
        e = lambda s: L.append(Op(s))
        self.nstamp = 1
        if a.prio:
            e("s_setprio %d" % a.prio)
        e("s_lshl_b32 s34, s%d, 13" % sW)
        e("s_add_u32 m0, s34, %d" % LDS_S)
        for half in range(2):
            if half:
                e("s_add_u32 m0, s34, %d" % (LDS_S + 4096))
            e("s_add_u32 s35, s34, %d" % (4096 * half))
            for j in range(4):
                off = " offset:%d" % (1024 * j) if j else ""
                e("buffer_load_dwordx4 v%d, %s, s35 offen%s%s lds" % (vOFFK[j], sr(sQ, 4), off, a.qflags))
        e("v_and_b32 v1, 31, v0")
        e("v_lshrrev_b32 v2, 5, v0")
        e("v_and_b32 v3, 15, v0")
        e("v_xor_b32 v3, v3, v2")
        e("v_lshlrev_b32 v1, 8, v1")
        e("s_add_u32 s29, s34, %d" % LDS_S)
        for k in range(8):
            if k:
                e("v_xor_b32 v4, %d, v3" % (2 * k))
                e("v_lshl_add_u32 v%d, v4, 4, v1" % vAK[k])
            else:
                e("v_lshl_add_u32 v%d, v3, 4, v1" % vAK[k])
            e("v_add_u32 v%d, s29, v%d" % (vAS[k], vAK[k]))
        e("v_bfe_u32 v1, v0, 2, 2")
        e("v_lshl_add_u32 v3, v2, 2, v1")
        e("v_lshlrev_b32 v3, 8, v3")
        e("v_bfe_u32 v4, v0, 1, 1")
        e("v_lshl_add_u32 v3, v4, 3, v3")
        e("v_add_u32 v3, %d, v3" % LDS_V)
        e("v_bfe_u32 v4, v0, 4, 1")
        e("v_and_b32 v5, 1, v0")
        e("v_lshl_add_u32 v4, v4, 1, v5")
        e("v_lshl_add_u32 v4, v1, 2, v4")
        for dt in range(4):
            if dt:
                e("v_xor_b32 v5, %d, v4" % (4 * dt))
                e("v_lshl_add_u32 v%d, v5, 4, v3" % vAV[dt])
            else:
                e("v_lshl_add_u32 v%d, v4, 4, v3" % vAV[dt])
        for r in range(64):
            e("v_mov_b32 v%d, 0" % (vO + r))
        e("v_mov_b32 v%d, 0" % vL[0])
        e("v_mov_b32 v%d, 0" % vL[1])
        e("s_mov_b32 s%d, 0x%08x" % (sSC, f32bits(math.log2(math.e) / math.sqrt(128.0))))
        e("s_mov_b32 s37, 0xffff0000")
        self.stamp(L)
        e("s_waitcnt vmcnt(0)")
        self.stamp(L)
        for k in range(8):
            e("ds_read_b128 %s, v%d" % (vr(vQ + 4 * k, 4), vAS[k]))

        def qscale(k):
            out = []
            for r in range(4):
                q = vQ + 4 * k + r
                t0, t1 = vX[2 * (r & 1)], vX[2 * (r & 1) + 1]
                out.append(Op("v_lshlrev_b32 v%d, 16, v%d" % (t0, q)))
                out.append(Op("v_and_b32 v%d, s37, v%d" % (t1, q)))
                out.append(Op("v_mul_f32 v%d, s%d, v%d" % (t0, sSC, t0)))
                out.append(Op("v_mul_f32 v%d, s%d, v%d" % (t1, sSC, t1)))
                out.append(Op("v_cvt_pk_bf16_f32 v%d, v%d, v%d" % (q, t0, t1)))
            return out

        L.append("WAITL")
        L += qscale(0)
        L.append("WAITL")
        L += qscale(1)
        e("s_waitcnt lgkmcnt(0)")
        e("s_barrier")
        self.stamp(L)
        for k in range(8):
            L.append(self.kread(0, k))
        L += qscale(2)

        NB = 32
        mf = {}
        fill = {}
        drop = set(a.drop.split(",")) if a.drop else set()

        def add(G, op, pri):
            if G >= 16 and not isinstance(op, str):
                for d in drop:
                    if op.text.startswith(d):
                        return
            fill.setdefault(G, []).append((pri, len(fill.get(G, [])), op))

        def cost(G):
            c = 0
            for (_, _, o) in fill.get(G, []):
                c += 8 if (not isinstance(o, str) and o.kind == "trans") else 4
            return c

        MF = "v_mfma_f32_32x32x16_bf16"
        SM0 = a.sm0
        for b in range(NB):
            S = vS[b & 1]
            for k in range(8):
                c = vr(S, 16) if k else ("0" if b == 0 else vr(vC, 16))
                mf[16 * (b - 1) + k] = Op("%s %s, %s, %s, %s" % (MF, vr(S, 16), vr(vKF + 4 * k, 4), vr(vQ + 4 * k, 4), c))
            for v in range(8):
                t, dt = v >> 2, v & 3
                mf[16 * b + 8 + v] = Op("%s %s, %s, %s, %s" % (MF, vr(vO + 16 * dt, 16), vr(vVF + 4 * v, 4), vr(vP + 4 * t, 4), vr(vO + 16 * dt, 16)))
            for r in range(16):
                if b == 0:
                    g0 = (r * 10) // 16
                    add(g0, Op("v_add_f32 v%d, v%d, v%d" % (S + r, S + r, vC)), 11)
                    add(g0, Op("v_exp_f32 v%d, v%d" % (S + r, S + r)), 12)
                else:
                    g0 = 16 * (b - 1) + SM0 + r
                    if b == NB - 1 and g0 >= 16 * b:
                        g0 = 16 * b + (g0 - 16 * b) // 2
                    add(g0, Op("v_exp_f32 v%d, v%d" % (S + r, S + r)), 12)
                add(g0 + 1, Op("v_add_f32 v%d, v%d, v%d" % (vL[r & 1], vL[r & 1], S + r)), 14)
                if r & 1:
                    add(g0 + 1, Op("v_cvt_pk_bf16_f32 v%d, v%d, v%d" % (vP + r // 2, S + r - 1, S + r)), 16)
        for k in range(8):
            if 3 + k < 8:
                for o in qscale(3 + k):
                    add(-16 + k, o, 13)
            add(-16 + k, self.kread(1, k), 5)
        S = vS[0]
        mx = []
        mx.append(Op("v_max3_f32 v%d, v%d, v%d, v%d" % (vX[0], S, S + 1, S + 2)))
        mx.append(Op("v_max3_f32 v%d, v%d, v%d, v%d" % (vX[1], S + 3, S + 4, S + 5)))
        mx.append(Op("v_max3_f32 v%d, v%d, v%d, v%d" % (vX[2], S + 6, S + 7, S + 8)))
        mx.append(Op("v_max3_f32 v%d, v%d, v%d, v%d" % (vX[3], S + 9, S + 10, S + 11)))
        mx.append(Op("v_max3_f32 v%d, v%d, v%d, v%d" % (vX[0], vX[0], S + 12, S + 13)))
        mx.append(Op("v_max3_f32 v%d, v%d, v%d, v%d" % (vX[1], vX[1], S + 14, S + 15)))
        mx.append(Op("v_max3_f32 v%d, v%d, v%d, v%d" % (vX[0], vX[0], vX[2], vX[3])))
        mx.append(Op("v_max_f32 v%d, v%d, v%d" % (vX[0], vX[0], vX[1])))
        mx.append(Op("v_mov_b32 v%d, v%d" % (vX[1], vX[0])))
        mx.append(Op("v_permlane32_swap_b32 v%d, v%d" % (vX[0], vX[1])))
        mx.append(Op("v_max_f32 v%d, v%d, v%d" % (vX[0], vX[0], vX[1])))
        for r in range(16):
            mx.append(Op("v_sub_f32 v%d, 0, v%d" % (vC + r, vX[0])))
        for o in mx:
            add(-4, o, 13)
        G0, G1 = -16, 16 * NB
        for G in range(G0, G1):
            if G < -9 or (G % 32) in (7, 11, 15, 23):
                add(G, "WAITL", 1)
        for t in range(16):
            beta = 32 * t - 3
            add(beta, Op("s_waitcnt lgkmcnt(0)"), 1)
            add(beta, Op("s_barrier"), 2)
            if a.stamp:
                st = []
                self.stamp(st, wait=False)
                add(beta, st[0], 0)
            seq = []
            for (kind, blk) in (("V", 2 * t), ("K", 2 * t + 2), ("V", 2 * t + 1), ("K", 2 * t + 3)):
                if kind == "V":
                    seq += [self.vread(blk, v, u) for v in range(8) for u in range(2)]
                else:
                    seq += [self.kread(blk, k) if blk < NB else None for k in range(8)]
            G = beta
            for q, o in enumerate(seq):
                if o is None:
                    continue
                G = max(G, beta + (q * a.rspan) // 48)
                while t > 0 and cost(G) + 4 > 24 + (4 if (a.stamp and G == beta) else 0):
                    G += 1
                add(G, o, 5)
            assert G <= beta + 29, (t, G - beta)
        L.append("WAITL")
        for G in range(G0, G1):
            if a.loop and G in (16, 144, 272, 400):
                L.append(Op("MARK%d:" % G))
            if G in mf:
                L.append(mf[G])
            for (_, _, o) in sorted(fill.get(G, []), key=lambda x: (x[0], x[1])):
                L.append(o)
        assert max(fill) < G1
        if a.verbose:
            sys.stderr.write("gap costs 64..128: %s\n" % [cost(G) for G in range(64, 128)])
        self.stamp(L)
        e("v_add_f32 v%d, v%d, v%d" % (vL[0], vL[0], vL[1]))
        e("v_mov_b32 v%d, v%d" % (vL[1], vL[0]))
        e("v_permlane32_swap_b32 v%d, v%d" % (vL[0], vL[1]))
        e("v_add_f32 v%d, v%d, v%d" % (vL[0], vL[0], vL[1]))
        e("v_rcp_f32 v%d, v%d" % (vX[0], vL[0]))
        e("s_add_u32 s29, s34, %d" % LDS_S)
        e("v_lshlrev_b32 v1, 4, v0")
        e("v_add_u32 v1, s29, v1")
        for x in range(8):
            o = vO + 8 * x
            for r in range(8):
                e("v_mul_f32 v%d, v%d, v%d" % (o + r, vX[0], o + r))
            for r in range(4):
                e("v_cvt_pk_bf16_f32 v%d, v%d, v%d" % (vKF + 4 * x + r, o + 2 * r, o + 2 * r + 1))
            e("ds_write_b128 v%d, %s" % (vAS[x], vr(vKF + 4 * x, 4)))
        e("s_waitcnt lgkmcnt(0)")
        for n in range(8):
            e("ds_read_b128 %s, v1 offset:%d" % (vr(vVF + 4 * n, 4), 1024 * n))
        e("s_add_u32 s35, s34, 4096")
        for n in range(8):
            L.append(Op("s_waitcnt lgkmcnt(%d)" % (7 - n)))
            off = " offset:%d" % (1024 * (n & 3)) if n & 3 else ""
            e("buffer_store_dwordx4 %s, v%d, %s, s%d offen%s%s" % (vr(vVF + 4 * n, 4), vOFFK[n & 3], sr(sO, 4), 35 if n >= 4 else 34, off, a.stflags))
        self.stamp(L)
        if a.stamp:
            e("s_waitcnt vmcnt(0)")
            self.stamp(L)
        return L

    def fold(self, ops):
        idx = [i for i, o in enumerate(ops) if o.kind == "label" and o.text.startswith("MARK")]
        segs = [ops[idx[i] + 1:idx[i + 1]] for i in range(len(idx) - 1)]
        strip = lambda seg: [o.text for o in seg if not o.text.startswith("s_mem")]
        for sg in segs[1:]:
            assert strip(sg) == strip(segs[0]), "periods differ"
        body = segs[-1]
        out = ops[:idx[0]]
        out.append(Op("s_mov_b32 s38, %d" % len(segs)))
        out.append(Op("L_loop:"))
        out += body
        out.append(Op("s_sub_u32 s38, s38, 1"))
        out.append(Op("s_cmp_lg_u32 s38, 0"))
        out.append(Op("s_cbranch_scc1 L_loop"))
        out += ops[idx[-1] + 1:]
        return out

    def build(self):
        a = self.a
        pro = self.prologue()
        comp = self.compute()
        n1 = self.nstamp
        hel = self.helper()
        self.nstamp_max = max(n1, self.nstamp)
        assert self.nstamp_max <= 26
        self.stamp_out(comp)
        self.stamp_out(hel)
        comp = auto_lgkm(comp)
        full_c = check_hazards(pro + comp)
        check_waits(full_c)
        full_h = check_hazards(pro + hel)
        npro = len(check_hazards(pro))
        hel = full_h[npro:]
        out = []
        w = out.append
        w("; @launch grid=(256,1,1) block=(512,1,1) lds=163840")
        w('.amdgcn_target "amdgcn-amd-amdhsa--gfx950"')
        w(".text")
        w(".globl %s" % NAME)
        w(".p2align 8")
        w(".type %s,@function" % NAME)
        w("%s:" % NAME)
        if a.loop:
            full_c = self.fold(full_c)
        for o in full_c:
            w(("" if o.kind == "label" else "    ") + o.text)
        w("L_end:")
        w("    s_endpgm")
        w("L_helper:")
        for o in hel:
            w("    " + o.text)
        w("    s_endpgm")
        w('.section .rodata,"a"')
        w(".p2align 6")
        w(".amdhsa_kernel %s" % NAME)
        w("  .amdhsa_next_free_vgpr 256")
        w("  .amdhsa_next_free_sgpr 102")
        w("  .amdhsa_accum_offset 256")
        w("  .amdhsa_group_segment_fixed_size 0")
        w("  .amdhsa_kernarg_size 48")
        w("  .amdhsa_user_sgpr_count 2")
        w("  .amdhsa_user_sgpr_kernarg_segment_ptr 1")
        w("  .amdhsa_system_sgpr_workgroup_id_x 1")
        w(".end_amdhsa_kernel")
        nh = sum(1 for o in full_c if o.tag == "hz")
        sys.stderr.write("compute ops %d, hazard nops %d, helper ops %d\n" % (len(full_c), nh, len(hel)))
        return "\n".join(out) + "\n"


if __name__ == "__main__":
    p = argparse.ArgumentParser()
    p.add_argument("-o", default="standalone__gqa_softmax__near_ridge.s")
    p.add_argument("--stamp", action="store_true")
    p.add_argument("--prio", type=int, default=1)
    p.add_argument("--loop", action="store_true")
    p.add_argument("--drop", default="")
    p.add_argument("--rot", type=int, default=1)
    p.add_argument("--vfirst", type=int, default=0)
    p.add_argument("--ramp", default="0,1,2,4")
    p.add_argument("--sm0", type=int, default=10)
    p.add_argument("--qflags", default="nt")
    p.add_argument("--verbose", action="store_true")
    p.add_argument("--rt", action="store_true")
    p.add_argument("--rspan", type=int, default=29)
    p.add_argument("--ldflags", default="nt")
    p.add_argument("--stflags", default="")
    a = p.parse_args()
    for f in ("ldflags", "stflags", "qflags"):
        x = getattr(a, f)
        setattr(a, f, (" " + x.replace(",", " ")) if x and x != "-" else "")
    open(a.o, "w").write(Gen(a).build())
```
